```python
import torch

def _softmax(x, axis=-1):
    return torch.softmax(x, dim=axis)
def _gelu(x):
    return torch.nn.functional.gelu(x, approximate="tanh")
def _silu(x):
    return torch.nn.functional.silu(x)
def _sigmoid(x):
    return torch.sigmoid(x)
def _layernorm(x, axis=-1, eps=1e-5):
    m = x.mean(dim=axis, keepdim=True)
    v = x.var(dim=axis, keepdim=True, unbiased=False)
    return (x - m) / torch.sqrt(v + eps)
def _scatter_add(tgt, idx, src, axis=0):
    return tgt.clone().index_add_(axis, idx, src)
def _segment_sum(src, seg, n):
    out = torch.zeros((n,) + src.shape[1:], dtype=src.dtype)
    return out.index_add_(0, seg, src)
def _pad(x, pw):
    flat = tuple(v for pair in reversed(pw) for v in pair)
    return torch.nn.functional.pad(x, flat)

kernel_name = 'concat_heads__gqa_block_cached__gqa_block_cached__near_ridge'

def setup_inputs():

    _w = (lambda a: (lambda t: t.to(torch.bfloat16) if t.is_floating_point() else t)(torch.as_tensor(a)))
    def _A_setup():
        B, Sq, D = 8, 160, 640
        Hq, Hkv, Sk, Dh = 32, 32, 512, 128
        assert Hq % Hkv == 0, (Hq, Hkv)
        return {
            "x": _w((lambda *s: torch.randn(*s, dtype=torch.bfloat16) * 0.8)(B, Sq, D)),
            "k_cache": _w((lambda *s: torch.randn(*s, dtype=torch.bfloat16) * 0.8)(B, Hkv, Sk, Dh)),
            "v_cache": _w((lambda *s: torch.randn(*s, dtype=torch.bfloat16) * 0.05)(B, Hkv, Sk, Dh)),
            "wq": _w((lambda *s: torch.randn(*s, dtype=torch.bfloat16) * 0.8)(D, Hq * Dh) * (D ** -0.5)),
            "wo": _w((lambda *s: torch.randn(*s, dtype=torch.bfloat16) * 0.05)(Hq * Dh, D) * ((Hq * Dh) ** -0.5)),
        }
    _A_in = _A_setup()

    def _B_setup():
        B, Sq, D = 8, 160, 640
        Hq, Hkv, Sk, Dh = 32, 32, 512, 128
        assert Hq % Hkv == 0, (Hq, Hkv)
        return {
            "x": _w((lambda *s: torch.randn(*s, dtype=torch.bfloat16) * 0.8)(B, Sq, D)),
            "k_cache": _w((lambda *s: torch.randn(*s, dtype=torch.bfloat16) * 0.8)(B, Hkv, Sk, Dh)),
            "v_cache": _w((lambda *s: torch.randn(*s, dtype=torch.bfloat16) * 0.05)(B, Hkv, Sk, Dh)),
            "wq": _w((lambda *s: torch.randn(*s, dtype=torch.bfloat16) * 0.8)(D, Hq * Dh) * (D ** -0.5)),
            "wo": _w((lambda *s: torch.randn(*s, dtype=torch.bfloat16) * 0.05)(Hq * Dh, D) * ((Hq * Dh) ** -0.5)),
        }
    _B_in = _B_setup()

    return {
        "A_x": _A_in["x"],
        "A_k_cache": _A_in["k_cache"],
        "A_v_cache": _A_in["v_cache"],
        "A_wq": _A_in["wq"],
        "A_wo": _A_in["wo"],
        "B_x": _B_in["x"],
        "B_k_cache": _B_in["k_cache"],
        "B_v_cache": _B_in["v_cache"],
        "B_wq": _B_in["wq"],
        "B_wo": _B_in["wo"],
    }

def reference(A_x, A_k_cache, A_v_cache, A_wq, A_wo, B_x, B_k_cache, B_v_cache, B_wq, B_wo):
    def _A_ref(x, k_cache, v_cache, wq, wo):
        B, Sq, D = x.shape
        Hq, Dh = 32, 128
        Hkv = k_cache.shape[1]
        rep = Hq // Hkv
        q = (lambda x, *d: x.permute(*d))((x @ wq).reshape(B, Sq, Hq, Dh), 0, 2, 1, 3)
        k = (lambda x, n, axis: torch.repeat_interleave(x, n, dim=axis))(k_cache, rep, axis=1)
        v = (lambda x, n, axis: torch.repeat_interleave(x, n, dim=axis))(v_cache, rep, axis=1)
        scores = torch.einsum("bhqd,bhkd->bhqk", q, k) * (Dh ** -0.5)
        p = _softmax(scores, axis=-1)
        o = torch.einsum("bhqk,bhkd->bhqd", p, v)
        return (lambda x, *d: x.permute(*d))(o, 0, 2, 1, 3).reshape(B, Sq, Hq * Dh) @ wo

    def _B_ref(x, k_cache, v_cache, wq, wo):
        B, Sq, D = x.shape
        Hq, Dh = 32, 128
        Hkv = k_cache.shape[1]
        rep = Hq // Hkv
        q = (lambda x, *d: x.permute(*d))((x @ wq).reshape(B, Sq, Hq, Dh), 0, 2, 1, 3)
        k = (lambda x, n, axis: torch.repeat_interleave(x, n, dim=axis))(k_cache, rep, axis=1)
        v = (lambda x, n, axis: torch.repeat_interleave(x, n, dim=axis))(v_cache, rep, axis=1)
        scores = torch.einsum("bhqd,bhkd->bhqk", q, k) * (Dh ** -0.5)
        p = _softmax(scores, axis=-1)
        o = torch.einsum("bhqk,bhkd->bhqd", p, v)
        return (lambda x, *d: x.permute(*d))(o, 0, 2, 1, 3).reshape(B, Sq, Hq * Dh) @ wo

    a = _A_ref(A_x, A_k_cache, A_v_cache, A_wq, A_wo)
    b = _B_ref(B_x, B_k_cache, B_v_cache, B_wq, B_wo)
    return torch.concatenate([a, b], axis=-1)
```

```python
import re

class R:
    __slots__ = ("k", "i", "n")
    def __init__(self, k, i, n=1):
        self.k, self.i, self.n = k, i, n
    def __str__(self):
        return f"{self.k}{self.i}" if self.n == 1 else f"{self.k}[{self.i}:{self.i+self.n-1}]"
    __repr__ = __str__
    def __getitem__(self, x):
        if isinstance(x, slice):
            a = x.start or 0; b = self.n if x.stop is None else x.stop
            assert 0 <= a < b <= self.n, (self, x)
            return R(self.k, self.i + a, b - a)
        assert 0 <= x < self.n, (self, x)
        return R(self.k, self.i + x, 1)
    def regs(self):
        return [(self.k, self.i + j) for j in range(self.n)]

def v(i, n=1): return R("v", i, n)
def a(i, n=1): return R("a", i, n)
def s(i, n=1): return R("s", i, n)
VCC = R("vcc", 0, 1); VCC.__class__ = R
class Special(R):
    def __init__(self, name): self.k, self.i, self.n = name, 0, 1
    def __str__(self): return self.k
    __repr__ = __str__
vcc = Special("vcc"); m0 = Special("m0"); execr = Special("exec"); scc = Special("scc")

TRANS = ("v_exp_f32", "v_log_f32", "v_rcp_f32", "v_rsq_f32", "v_sqrt_f32", "v_sin_f32", "v_cos_f32")

class Ins:
    __slots__ = ("op", "args", "mods", "rd", "wr", "cls", "passes", "srcc", "srcab", "text", "comment")

def regs_of(x):
    return x.regs() if isinstance(x, R) else []

class Prog:
    def __init__(self):
        self.ins = []
    def raw(self, text):
        i = Ins(); i.op = None; i.text = text; i.cls = "raw"; i.rd = []; i.wr = []; i.args = (); i.mods = ""; i.comment = ""
        self.ins.append(i)
    def label(self, name):
        i = Ins(); i.op = None; i.text = name + ":"; i.cls = "label"; i.rd = []; i.wr = []; i.args = (); i.mods = ""; i.comment = ""
        self.ins.append(i)
    def loop_begin(self, name):
        i = Ins(); i.op = None; i.text = name + ":"; i.cls = "loopbegin"; i.rd = []; i.wr = []; i.args = (); i.mods = ""; i.comment = ""
        self.ins.append(i)
    def loop_end(self):
        i = Ins(); i.op = None; i.text = ""; i.cls = "loopend"; i.rd = []; i.wr = []; i.args = (); i.mods = ""; i.comment = ""
        self.ins.append(i)
    def comment(self, t):
        self.raw("    ; " + t)
    def __call__(self, op, *args, mods="", comment=""):
        i = Ins(); i.op = op; i.args = args; i.mods = mods; i.comment = comment
        i.passes = 0; i.srcc = []; i.srcab = []
        rd, wr = [], []
        A = list(args)
        if op.startswith("v_mfma"):
            i.cls = "mfma"
            i.passes = 8 if "32x32x16" in op else 4
            wr = regs_of(A[0]); i.srcab = regs_of(A[1]) + regs_of(A[2]); i.srcc = regs_of(A[3])
            rd = i.srcab + i.srcc
        elif op.startswith("v_cmp"):
            i.cls = "valu"; wr = regs_of(A[0]); rd = sum((regs_of(x) for x in A[1:]), [])
        elif op.startswith("v_permlane") and "swap" in op:
            i.cls = "valu"; wr = regs_of(A[0]) + regs_of(A[1]); rd = list(wr)
        elif op in ("v_readfirstlane_b32", "v_readlane_b32"):
            i.cls = "valu"; wr = regs_of(A[0]); rd = sum((regs_of(x) for x in A[1:]), [])
        elif op.startswith("v_"):
            i.cls = "valu"; wr = regs_of(A[0]); rd = sum((regs_of(x) for x in A[1:]), [])
            if op.startswith(("v_fmac", "v_pk_fmac", "v_dot2c")): rd += wr
            if op.startswith(("v_add_co", "v_addc_co", "v_sub_co", "v_subb_co")):
                wr = regs_of(A[0]) + regs_of(A[1]); rd = sum((regs_of(x) for x in A[2:]), [])
        elif op.startswith("ds_read") or op.startswith("ds_bpermute") or op.startswith("ds_swizzle"):
            i.cls = "dsread"; wr = regs_of(A[0]); rd = sum((regs_of(x) for x in A[1:]), [])
        elif op.startswith("ds_"):
            i.cls = "dswrite"; rd = sum((regs_of(x) for x in A), [])
        elif op.startswith(("buffer_load", "global_load")):
            if " lds" in (" " + mods) or "load_lds" in op:
                i.cls = "dma"; rd = sum((regs_of(x) for x in A), []) + [("m0", 0)]
            else:
                i.cls = "vload"; wr = regs_of(A[0]); rd = sum((regs_of(x) for x in A[1:]), [])
        elif op.startswith(("buffer_store", "global_store")):
            i.cls = "vstore"; rd = sum((regs_of(x) for x in A), [])
        elif op.startswith(("buffer_atomic", "global_atomic")):
            i.cls = "vatomic"; rd = sum((regs_of(x) for x in A), [])
            if "sc0" in mods: wr = regs_of(A[0])
        elif op.startswith(("buffer_wbl2", "buffer_inv")):
            i.cls = "vmisc"
        elif op.startswith("s_load") or op.startswith("s_memtime") or op.startswith("s_memrealtime") or op.startswith("s_atomic"):
            i.cls = "smem"; wr = regs_of(A[0]); rd = sum((regs_of(x) for x in A[1:]), [])
        elif op.startswith(("s_cmp", "s_bitcmp")):
            i.cls = "salu"; rd = sum((regs_of(x) for x in A), [])
        elif op in ("s_waitcnt", "s_barrier", "s_nop", "s_setprio", "s_sleep", "s_endpgm") or op.startswith(("s_branch", "s_cbranch")):
            i.cls = "ctl"
        elif op.startswith("s_"):
            i.cls = "salu"; wr = regs_of(A[0]); rd = sum((regs_of(x) for x in A[1:]), [])
        else:
            raise ValueError(op)
        i.rd, i.wr = rd, wr
        t = "    " + op
        if args: t += " " + ", ".join(str(x) for x in args)
        if mods: t += " " + mods
        i.text = t
        self.ins.append(i)
        return i

    def finalize(self, auto_vm=True):
        out = []
        hist = []
        slot = 0
        lgkm = []
        vmq = []
        def emit_ctl(op, text, nslots=1):
            nonlocal slot
            j = Ins(); j.op = op; j.text = "    " + text; j.cls = "ctl"; j.rd = []; j.wr = []; j.args = (); j.mods = ""; j.comment = ""
            out.append(j); slot += nslots
        def need(i):
            n = 0
            rd = set(i.rd); wr = set(i.wr)
            for (ps, p) in reversed(hist):
                d = slot - ps - 1
                if d >= 20: break
                pw = set(p.wr)
                req = 0
                if p.cls == "valu":
                    vw = {r for r in pw if r[0] in "va"}
                    sw = {r for r in pw if r[0] in ("s", "vcc")}
                    if i.cls == "mfma" and vw & rd: req = max(req, 2)
                    if i.op.startswith("v_permlane") and vw & rd: req = max(req, 2)
                    if "dpp" in i.op and vw & rd: req = max(req, 2)
                    if i.op in ("v_readfirstlane_b32", "v_readlane_b32") and vw & rd: req = max(req, 1)
                    if p.op in TRANS and i.cls in ("valu", "mfma", "vstore", "dswrite") and vw & rd: req = max(req, 1)
                    if sw & rd:
                        if i.cls == "valu": req = max(req, 2)
                        if i.cls in ("vload", "vstore", "dma", "vatomic"): req = max(req, 5)
                        if i.cls in ("salu",): req = max(req, 1)
                    if ("exec", 0) in pw: req = max(req, 5)
                if p.cls == "mfma":
                    big = p.passes == 8
                    if i.cls == "mfma":
                        if pw & set(i.srcab): req = max(req, 12 if big else 8)
                        if pw & set(i.srcc):
                            if not (list(p.wr) == list(i.srcc) and p.passes == i.passes): req = max(req, 10 if big else 6)
                    else:
                        if pw & (rd | wr): req = max(req, 12 if big else 8)
                    if i.cls in ("valu",) and set(p.srcc) & wr: req = max(req, 7 if big else 3)
                    if i.cls in ("dsread", "vload") and set(p.srcc) & wr: req = max(req, 7 if big else 3)
                if p.cls == "salu" and ("m0", 0) in pw and i.cls == "dma": req = max(req, 1)
                if p.cls in ("vstore", "vatomic") and ("x4" in p.op or "x3" in p.op) and set(p.rd) & wr and i.cls == "valu":
                    req = max(req, 2)
                n = max(n, req - d)
            return n
        seq = []
        idx0 = 0
        L = self.ins
        while idx0 < len(L):
            x = L[idx0]
            if x.cls == "loopbegin":
                e = idx0 + 1
                while L[e].cls != "loopend":
                    assert L[e].cls != "loopbegin", "nested loops unsupported"
                    e += 1
                body = L[idx0 + 1:e]
                seq.append(("guard", None))
                seq.append(("mark", None))
                seq += [("i", b) for b in body]
                seq.append(("discard", x))
                seq += [("i", b) for b in body]
                idx0 = e + 1
            else:
                seq.append(("i", x)); idx0 += 1
        markpos = 0
        for tag, i in seq:
            if tag == "guard":
                emit_ctl("s_waitcnt", "s_waitcnt lgkmcnt(0)"); lgkm = []
                emit_ctl("s_nop", "s_nop 15", 16)
                continue
            if tag == "mark":
                markpos = len(out); continue
            if tag == "discard":
                del out[markpos:]
                out.append(i); continue
            if i.cls == "raw":
                out.append(i); continue
            if i.cls == "label":
                out.append(i); continue
            touched = set(i.rd) | set(i.wr)
            k = None
            for idx, (dst, kind) in enumerate(lgkm):
                if dst & touched: k = idx
            if k is not None:
                anysm = any(kd == "smem" for _, kd in lgkm)
                cnt = 0 if anysm else len(lgkm) - 1 - k
                cnt = min(cnt, 15)
                emit_ctl("s_waitcnt", f"s_waitcnt lgkmcnt({cnt})")
                lgkm = lgkm[len(lgkm) - cnt:] if cnt else []
            if auto_vm:
                k = None
                for idx, dst in enumerate(vmq):
                    if dst & touched: k = idx
                if k is not None:
                    cnt = min(len(vmq) - 1 - k, 63)
                    emit_ctl("s_waitcnt", f"s_waitcnt vmcnt({cnt})")
                    vmq = vmq[len(vmq) - cnt:] if cnt else []
            if i.cls != "ctl":
                n = need(i)
                while n > 0:
                    m = min(n, 16)
                    emit_ctl("s_nop", f"s_nop {m-1}", m); n -= m
            if i.op == "s_waitcnt":
                txt = i.text
                mm = re.search(r"lgkmcnt\((\d+)\)", txt)
                if mm:
                    c = int(mm.group(1)); lgkm = lgkm[len(lgkm) - c:] if c else []
                mm = re.search(r"vmcnt\((\d+)\)", txt)
                if mm:
                    c = int(mm.group(1)); vmq = vmq[max(0, len(vmq) - c):] if c else []
            out.append(i)
            hist.append((slot, i))
            if len(hist) > 40: hist = hist[-40:]
            if i.op == "s_nop":
                slot += int(i.args[0]) + 1
            else:
                slot += 1
            if i.cls in ("dsread", "dswrite"): lgkm.append((set(i.wr), "ds"))
            if i.cls == "smem": lgkm.append((set(i.wr), "smem"))
            if i.cls in ("vload", "vstore", "dma", "vatomic", "vmisc"): vmq.append(set(i.wr))
        self.out = out
        self.end_lgkm = lgkm
        return out
    def text(self):
        return "\n".join(i.text + (("    ; " + i.comment) if i.comment else "") for i in self.out) + "\n"

def kd(name, vgpr, accum, sgpr=102):
    return f""".section .rodata,"a"
.p2align 6
.amdhsa_kernel {name}
  .amdhsa_next_free_vgpr {vgpr}
  .amdhsa_next_free_sgpr {sgpr}
  .amdhsa_accum_offset {accum}
  .amdhsa_group_segment_fixed_size 0
  .amdhsa_kernarg_size 104
  .amdhsa_user_sgpr_count 2
  .amdhsa_user_sgpr_kernarg_segment_ptr 1
  .amdhsa_system_sgpr_workgroup_id_x 1
.end_amdhsa_kernel
.text
"""
```

```python
import sys, math, struct
sys.path.insert(0, "work")
from asmlib import *

NAME = "concat_heads__gqa_block_cached__gqa_block_cached__near_ridge"
MF = "v_mfma_f32_16x16x32_bf16"
def f32(x): return struct.unpack("<I", struct.pack("<f", x))[0]
CSCALE = math.log2(math.e) / math.sqrt(128.0)
DOFF = 10.0

def interleave(p, mf, fill, lead=0):
    n = len(mf); k = len(fill); done = 0
    for _ in range(min(lead, k)):
        fill[done](); done += 1
    for i, m in enumerate(mf):
        m()
        tgt = lead + ((k - lead) * (i + 1) + n - 1) // n if k > lead else done
        while done < min(tgt, k):
            fill[done](); done += 1
    while done < k:
        fill[done](); done += 1

def srd(p, d, base, nbytes):
    p("s_mov_b32", d[0], base[0]); p("s_mov_b32", d[1], base[1])
    p("s_mov_b32", d[2], nbytes); p("s_mov_b32", d[3], 0x20000)

def add64(p, d, base, off):
    p("s_add_u32", d[0], base[0], off); p("s_addc_u32", d[1], base[1], 0)

def gen_k1(p, stamp=False):
    K = "qattn_kernel"
    p.raw(f".globl {K}\n.p2align 8\n.type {K},@function\n{K}:")
    SX, SW, SK, SV, SO = s(8, 4), s(12, 4), s(16, 4), s(20, 4), s(24, 4)
    sW, sHS, sRH, sCnt = s(28), s(29), s(30), s(31)
    sXoff, sWoff, sKoff, sVoff = s(32), s(33), s(34), s(35)
    sT0, sT1, sT2, sT3 = s(52), s(53), s(54), s(55)
    sMx, sMw, sMkv = s(56), s(57), s(58)
    sWslot, sWd, sXd, sXcur, sWiss = s(59), s(60), s(61), s(62), s(63)
    sKslot, sVslot, sKd, sVd, sIssue = s(64), s(65), s(66), s(67), s(68)
    sThr, sLow, sC, sBig = s(69), s(70), s(71), s(72)
    sKo, sVo = s(73), s(74)
    p("s_cmp_ge_u32", s(2), 256)
    p("s_cbranch_scc1", "K1_END")
    for i, off in enumerate((0, 8, 16, 24, 40, 48, 56, 64)):
        p("s_load_dwordx2", s(36 + 2 * i, 2), s(0, 2), off)
    p("s_load_dwordx2", s(4, 2), s(0, 2), 96)
    vL, vG, vL16, vT, vU = v(1), v(2), v(3), v(4), v(5)
    p("v_lshrrev_b32", vT, 6, v(0))
    p("v_and_b32", vL, 63, v(0))
    p("v_readfirstlane_b32", sW, vT)
    p("v_lshrrev_b32", vG, 4, vL)
    p("v_and_b32", vL16, 15, vL)
    p("s_lshr_b32", sHS, sW, 1); p("s_and_b32", sRH, sW, 1)
    sXcd, sJ, sBr, sB, sH0 = s(75), s(76), s(77), s(78), s(79)
    p("s_and_b32", sXcd, s(2), 7); p("s_lshr_b32", sJ, s(2), 3)
    p("s_lshr_b32", sBr, sXcd, 2); p("s_and_b32", sT0, sXcd, 3)
    p("s_and_b32", sB, sJ, 7); p("s_lshr_b32", sT1, sJ, 3)
    p("s_lshl_b32", sT0, sT0, 3); p("s_lshl_b32", sT1, sT1, 1); p("s_add_u32", sH0, sT0, sT1)
    p("s_waitcnt", mods="lgkmcnt(0)")
    p("s_cmp_eq_u32", sBr, 0)
    for i in range(4):
        p("s_cselect_b64", s(36 + 2 * i, 2), s(36 + 2 * i, 2), s(44 + 2 * i, 2))
    p("s_mul_i32", sT0, sB, 204800); add64(p, s(36, 2), s(36, 2), sT0); srd(p, SX, s(36, 2), 204800)
    p("s_lshl_b32", sT0, sB, 5); p("s_add_u32", sT0, sT0, sH0); p("s_lshl_b32", sT0, sT0, 17)
    add64(p, s(38, 2), s(38, 2), sT0); srd(p, SK, s(38, 2), 262144)
    add64(p, s(40, 2), s(40, 2), sT0); srd(p, SV, s(40, 2), 262144)
    p("s_lshl_b32", sT0, sH0, 8); add64(p, s(42, 2), s(42, 2), sT0)
    p("s_sub_u32", sT1, 640 * 8192, sT0)
    p("s_mov_b32", SW[0], s(42)); p("s_mov_b32", SW[1], s(43)); p("s_mov_b32", SW[2], sT1); p("s_mov_b32", SW[3], 0x20000)
    p("s_mul_i32", sT1, sBr, 10485760); p("s_mul_i32", sT2, sB, 160 * 8192); p("s_add_u32", sT1, sT1, sT2); p("s_add_u32", sT1, sT1, sT0)
    add64(p, s(4, 2), s(4, 2), sT1); srd(p, SO, s(4, 2), 159 * 8192 + 512)

    vXo = [v(6 + i) for i in range(5)]
    vWo = [v(11 + i) for i in range(4)]
    vKV = [v(15), v(16)]
    p("v_lshrrev_b32", vT, 3, vL)
    p("s_mul_i32", sT0, sW, 40)
    p("v_add_u32", vT, sT0, vT)
    p("v_mul_u32_u24", vT, 1280, vT)
    p("v_and_b32", vU, 7, vL)
    p("v_xor_b32", vU, vU, vG)
    for i in range(5):
        p("s_add_u32", sT0, sW, i); p("s_and_b32", sT0, sT0, 1); p("s_lshl_b32", sT0, sT0, 2)
        p("v_xor_b32", vXo[i], sT0, vU)
        p("v_lshl_add_u32", vXo[i], vXo[i], 4, vT)
        p("v_add_u32", vXo[i], 8 * i * 1280 - 1024 * (i % 4), vXo[i])
    p("s_lshl_b32", sT0, sRH, 4)
    p("v_add_u32", vT, sT0, vG)
    p("v_lshlrev_b32", vT, 13, vT)
    p("s_lshl_b32", sT0, sHS, 8)
    p("v_add_u32", vT, sT0, vT)
    p("v_lshlrev_b32", vU, 1, vG)
    p("v_xor_b32", vU, vU, vL16)
    for i in range(4):
        p("v_xor_b32", vWo[i], ((i >> 1) & 1) << 3, vU)
        p("v_lshl_add_u32", vWo[i], vWo[i], 4, vT)
        p("v_add_u32", vWo[i], 4 * i * 8192 - 1024 * i, vWo[i])
    p("v_lshlrev_b32", vT, 8, vG)
    for q in range(2):
        p("v_xor_b32", vKV[q], 8 * q, vU)
        p("v_lshl_add_u32", vKV[q], vKV[q], 4, vT)
    p("s_mul_i32", sMx, sW, 5120)
    p("s_lshl_b32", sT0, sHS, 13); p("s_lshl_b32", sT1, sRH, 12); p("s_add_u32", sMw, sT0, sT1)
    p("s_mov_b32", sMkv, sMw)
    p("s_lshl_b32", sT0, sHS, 17); p("s_add_u32", sKoff, sT0, sT1)
    p("s_mov_b32", sVoff, sKoff)
    p("s_mov_b32", sBig, 0x7f000000)

    XB = [0, 20480]; WB0 = 40960
    def dma_x(buf_s_or_imm, thunks=None):
        L = []
        def grp(i):
            def f():
                if i in (0, 4):
                    p("s_add_u32", m0, sMx, buf_s_or_imm)
                    if i == 4: p("s_add_u32", m0, m0, 4096)
                p("buffer_load_dwordx4", vXo[i], SX, sXoff, mods=f"offen offset:{1024*(i%4)} lds")
            return f
        L = [grp(i) for i in range(5)]
        L.append(lambda: p("s_add_u32", sXoff, sXoff, 128))
        return L
    def dma_w(buf):
        def grp(i):
            def f():
                if i == 0: p("s_add_u32", m0, sMw, buf)
                p("buffer_load_dwordx4", vWo[i], SW, sWoff, mods=f"offen offset:{1024*i} lds")
            return f
        L = [grp(i) for i in range(4)]
        L.append(lambda: p("s_add_u32", sWoff, sWoff, 32 * 8192))
        return L
    def dma_kv(srd_, soff, slot):
        def grp(i):
            def f():
                if i == 0: p("s_add_u32", m0, sMkv, slot)
                p("buffer_load_dwordx4", vKV[i & 1], srd_, soff, mods=f"offen offset:{1024*i} lds")
            return f
        return [grp(i) for i in range(4)]
    def run(L):
        for f in L: f()
    slot = lambda n: 16384 * ((n + 6) % 10)

    p("s_mov_b32", sXoff, 0); p("s_mov_b32", sWoff, 0)
    run(dma_x(XB[0])); run(dma_w(WB0)); run(dma_w(WB0 + 16384)); run(dma_x(XB[1])); run(dma_w(WB0 + 32768))
    run(dma_kv(SK, sKoff, slot(0))); p("s_add_u32", sKoff, sKoff, 8192)
    run(dma_kv(SK, sKoff, slot(1))); p("s_add_u32", sKoff, sKoff, 8192)
    run(dma_kv(SV, sVoff, slot(2))); p("s_add_u32", sVoff, sVoff, 8192)
    run(dma_kv(SK, sKoff, slot(3))); p("s_add_u32", sKoff, sKoff, 8192)

    vXA = [v(17), v(18)]
    vWA = [v(19 + t) for t in range(8)]
    p("s_mul_i32", sT0, sRH, 80)
    p("v_add_u32", vT, sT0, vL16); p("v_lshlrev_b32", vT, 7, vT)
    p("v_lshrrev_b32", vU, 1, vL16)
    p("v_xor_b32", vU, vU, vG)
    for h in range(2):
        p("v_xor_b32", vXA[h], 4 * h, vU)
        p("v_lshl_add_u32", vXA[h], vXA[h], 4, vT)
    vR, vF = v(27), v(28)
    p("v_lshrrev_b32", vR, 2, vL16)
    p("v_and_b32", vF, 1, vG); p("v_lshl_or_b32", vF, vF, 2, vR)
    p("v_lshl_add_u32", vT, vG, 3, vR); p("v_lshlrev_b32", vT, 8, vT)
    p("v_and_b32", vU, 3, vL16); p("v_lshl_add_u32", vT, vU, 3, vT)
    p("s_lshl_b32", sT0, sHS, 13); p("s_add_u32", sT0, sT0, WB0)
    p("v_add_u32", vT, sT0, vT)
    for t in range(8):
        p("v_xor_b32", vWA[t], t, vF)
        p("v_lshl_add_u32", vWA[t], vWA[t], 5, vT)

    ACC = lambda qt, t: v(32 + (qt * 8 + t) * 4, 4)
    BF = lambda st, qt: v(192 + st * 20 + qt * 4, 4)
    AF = lambda st, t: a(160 + st * 32 + t * 4, 4)
    for r in range(160): p("v_mov_b32", v(32 + r), 0)
    for r in range(160): p("v_accvgpr_write_b32", a(r), 0)

    def frag_reads(st, h):
        L = []
        for qt in range(5):
            L.append(lambda qt=qt: p("ds_read_b128", BF(st, qt), vXA[h], mods=f"offset:{qt*2048}"))
        for t in range(8):
            for u in range(2):
                L.append(lambda t=t, u=u: p("ds_read_b64_tr_b16", AF(st, t)[2*u:2*u+2], vWA[t], mods=f"offset:{1024*u}"))
        return L
    def mfmas(st):
        return [lambda t=t, qt=qt: p(MF, ACC(qt, t), AF(st, t), BF(st, qt), ACC(qt, t)) for t in range(8) for qt in range(5)]
    def adv_w():
        L = [lambda: (p("s_mov_b32", sWd, sWslot), p("s_add_u32", sWslot, sWslot, 16384), p("s_cmp_eq_u32", sWslot, 49152),
                      p("s_cselect_b32", sWslot, 0, sWslot), p("s_sub_u32", sWd, sWslot, sWd))]
        L += [lambda t=t: p("v_add_u32", vWA[t], sWd, vWA[t]) for t in range(8)]
        return L
    def adv_x():
        L = [lambda h=h: p("v_add_u32", vXA[h], sXd, vXA[h]) for h in range(2)]
        L.append(lambda: p("s_sub_u32", sXd, 0, sXd))
        return L

    p("s_waitcnt", mods="vmcnt(29)"); p("s_barrier")
    p("s_mov_b32", sWslot, 0); p("s_mov_b32", sXd, 20480); p("s_mov_b32", sXcur, 0); p("s_mov_b32", sWiss, WB0)
    run(frag_reads(0, 0)); run(adv_w())
    p("s_mov_b32", sCnt, 0)
    p.loop_begin("K1_QLOOP")
    for par in range(2):
        p("s_waitcnt", mods=f"vmcnt({9 if par == 0 else 4}) lgkmcnt(0)")
        p("s_barrier")
        fill = []
        fr = frag_reads(1 - par, 1 - par)
        if par == 1: fill += adv_x()
        dm = dma_w(sWiss)
        dm.append(lambda: (p("s_add_u32", sWiss, sWiss, 16384), p("s_cmp_eq_u32", sWiss, WB0 + 49152), p("s_cselect_b32", sWiss, WB0, sWiss)))
        if par == 1:
            dm += dma_x(sXcur)
            dm.append(lambda: p("s_xor_b32", sXcur, sXcur, 20480))
        mix = []
        a_, b_ = list(fr), list(dm)
        while a_ or b_:
            if a_: mix.append(a_.pop(0))
            if a_: mix.append(a_.pop(0))
            if b_: mix.append(b_.pop(0))
        fill += mix + adv_w()
        interleave(p, mfmas(par), fill)
    p("s_add_u32", sCnt, sCnt, 1)
    p("s_cmp_lt_u32", sCnt, 10)
    p("s_cbranch_scc1", "K1_QLOOP")
    p.loop_end()
    p("s_waitcnt", mods="vmcnt(0) lgkmcnt(0)")
    p("s_barrier")
    for n, isK in ((4, 0), (5, 1), (6, 0), (7, 1), (8, 0)):
        if isK: run(dma_kv(SK, sKoff, slot(n))); p("s_add_u32", sKoff, sKoff, 8192)
        else: run(dma_kv(SV, sVoff, slot(n))); p("s_add_u32", sVoff, sVoff, 8192)

    Q = lambda qt, st: a(160 + (qt * 4 + st) * 4, 4)
    p("s_mov_b32", sC, f32(CSCALE))
    for qt in range(5):
        for st in range(4):
            A0, A1 = ACC(qt, 2 * st), ACC(qt, 2 * st + 1)
            for r in range(4):
                p("v_mul_f32", A0[r], sC, A0[r]); p("v_mul_f32", A1[r], sC, A1[r])
            T = v(232 + 4 * (st & 1), 4)
            p("v_cvt_pk_bf16_f32", T[0], A0[0], A0[1]); p("v_cvt_pk_bf16_f32", T[1], A0[2], A0[3])
            p("v_cvt_pk_bf16_f32", T[2], A1[0], A1[1]); p("v_cvt_pk_bf16_f32", T[3], A1[2], A1[3])
            p("v_permlane32_swap_b32", T[0], T[2]); p("v_permlane32_swap_b32", T[1], T[3])
            p("v_permlane16_swap_b32", T[0], T[2]); p("v_permlane16_swap_b32", T[1], T[3])
            for r in range(4): p("v_accvgpr_write_b32", Q(qt, st)[r], T[r])

    S = lambda qt: v(32 + qt * 8, 8)
    P = lambda qt: v(72 + qt * 4, 4)
    NM = lambda qt: v(92 + qt * 4, 4)
    LA = lambda qt: v(112 + qt * 4, 4)
    ONES = v(132, 4)
    KF = lambda kt, st: v(136 + (kt * 4 + st) * 4, 4)
    VF = lambda t: v(168 + t * 4, 4)
    O = lambda qt, t: a((qt * 8 + t) * 4, 4)
    vM = [v(200 + i) for i in range(5)]
    vX1, vX2, vX3, vX4 = v(205), v(206), v(207), v(208)
    vKA = [v(17 + st) for st in range(4)]
    vVA = [v(21 + t) for t in range(8)]
    for r in range(40): p("v_mov_b32", v(92 + r), 0)
    for r in range(4): p("v_mov_b32", ONES[r], 0x3f803f80)
    p("s_lshl_b32", sT0, sHS, 13)
    p("s_add_u32", sT1, sT0, slot(0))
    p("v_lshlrev_b32", vT, 8, vL16); p("v_add_u32", vT, sT1, vT)
    p("v_and_b32", vU, 7, vL16); p("v_lshlrev_b32", vU, 1, vU); p("v_xor_b32", vU, vU, vG)
    for st in range(4):
        p("v_xor_b32", vKA[st], 4 * st, vU)
        p("v_lshl_add_u32", vKA[st], vKA[st], 4, vT)
    vR, vF = v(29), v(30)
    p("v_lshrrev_b32", vR, 2, vL16)
    p("v_and_b32", vF, 1, vG); p("v_lshl_or_b32", vF, vF, 2, vR)
    p("v_lshl_add_u32", vT, vG, 2, vR); p("v_lshlrev_b32", vT, 8, vT)
    p("v_and_b32", vU, 3, vL16); p("v_lshl_add_u32", vT, vU, 3, vT)
    p("s_add_u32", sT1, sT0, slot(2))
    p("v_add_u32", vT, sT1, vT)
    for t in range(8):
        p("v_xor_b32", vVA[t], t, vF)
        p("v_lshl_add_u32", vVA[t], vVA[t], 5, vT)

    def k_reads():
        return [lambda kt=kt, st=st: p("ds_read_b128", KF(kt, st), vKA[st], mods=f"offset:{kt*4096}") for st in range(4) for kt in range(2)]
    def v_reads():
        return [lambda t=t, u=u: p("ds_read_b64_tr_b16", VF(t)[2*u:2*u+2], vVA[t], mods=f"offset:{u*4096}") for t in range(8) for u in range(2)]
    def qk(qt):
        return [lambda kt=kt, st=st: p(MF, S(qt)[4*kt:4*kt+4], KF(kt, st), Q(qt, st), NM(qt) if st == 0 else S(qt)[4*kt:4*kt+4])
                for st in range(4) for kt in range(2)]
    def pv(qt):
        L = [lambda t=t: p(MF, O(qt, t), VF(t), P(qt), O(qt, t)) for t in range(8)]
        L.append(lambda: p(MF, LA(qt), ONES, P(qt), LA(qt)))
        return L
    slow_sites = []
    def softmax(qt, thr, low):
        X = S(qt); m = vM[qt]
        lbl = f"K1_SLOW{len(slow_sites)}"
        slow_sites.append((lbl, qt, low))
        L = [lambda: p("v_max3_f32", m, X[0], X[1], X[2]),
             lambda: p("v_max3_f32", vX1, X[3], X[4], X[5]),
             lambda: p("v_max3_f32", m, X[6], X[7], m),
             lambda: p("v_max_f32", m, m, vX1),
             lambda: (p("v_cmp_lt_f32", vcc, thr, m), p("s_cbranch_vccnz", lbl), p.label(lbl + "_RET"))]
        for r in range(8):
            L.append(lambda r=r: p("v_exp_f32", X[r], X[r]))
            if r & 1 and r >= 3:
                L.append(lambda r=r: p("v_cvt_pk_bf16_f32", P(qt)[(r - 3) // 2], X[r - 3], X[r - 2]))
        L.append(lambda: p("v_cvt_pk_bf16_f32", P(qt)[3], X[6], X[7]))
        return L
    def adv(slot_s, d_s, regs):
        L = [lambda: (p("s_add_u32", slot_s, slot_s, 32768), p("s_cmp_ge_u32", slot_s, 163840),
                      p("s_cselect_b32", sT0, 163840, 0), p("s_sub_u32", slot_s, slot_s, sT0),
                      p("s_sub_u32", d_s, 32768, sT0))]
        L += [lambda r=r: p("v_add_u32", r, d_s, r) for r in regs]
        return L

    p("s_mov_b32", sThr, 0xff800000); p("s_mov_b32", sLow, 0xff800000)
    run(k_reads())
    p("s_mov_b32", sKslot, slot(1)); p("s_mov_b32", sVslot, slot(2)); p("s_mov_b32", sIssue, slot(9))
    run(qk(0))
    for st in range(4): p("v_add_u32", vKA[st], 16384, vKA[st])
    interleave(p, qk(1), softmax(0, sThr, sLow))
    interleave(p, qk(2), softmax(1, sThr, sLow))
    interleave(p, qk(3), softmax(2, sThr, sLow))
    p("s_mov_b32", sCnt, 0)

    def body(last):
        p("s_waitcnt", mods=f"vmcnt({0 if last else 24}) lgkmcnt(0)")
        p("s_barrier")
        interleave(p, qk(4), v_reads() + softmax(3, sThr, sLow), lead=8)
        if not last:
            def selk(): p("s_cmp_lt_u32", sCnt, 11); p("s_cselect_b32", sKo, sKoff, sBig); p("s_add_u32", sKoff, sKoff, 8192)
            def selv():
                p("s_cmp_lt_u32", sCnt, 12); p("s_cselect_b32", sVo, sVoff, sBig); p("s_add_u32", sVoff, sVoff, 8192)
            def nxt():
                p("s_add_u32", sIssue, sIssue, 16384); p("s_cmp_eq_u32", sIssue, 163840); p("s_cselect_b32", sIssue, 0, sIssue)
            dm = [selk] + dma_kv(SK, sKo, sIssue) + [nxt, selv] + dma_kv(SV, sVo, sIssue) + [nxt]
            interleave(p, pv(0), k_reads() + softmax(4, sThr, sLow), lead=8)
            p("s_mov_b32", sThr, 0); p("s_mov_b32", sLow, 0)
            interleave(p, qk(0), dm[:6] + adv(sVslot, sVd, vVA))
            interleave(p, pv(1), softmax(0, 0, 0))
            interleave(p, qk(1), dm[6:] + adv(sKslot, sKd, vKA))
            interleave(p, pv(2), softmax(1, 0, 0))
            interleave(p, qk(2), [])
            interleave(p, pv(3), softmax(2, 0, 0))
            interleave(p, qk(3), [])
            interleave(p, pv(4), [])
        else:
            interleave(p, pv(0), softmax(4, sThr, sLow))
            for qt in range(1, 5): run(pv(qt))
    p.loop_begin("K1_ALOOP")
    body(False)
    p("s_add_u32", sCnt, sCnt, 1)
    p("s_cmp_lt_u32", sCnt, 15)
    p("s_cbranch_scc1", "K1_ALOOP")
    p.loop_end()
    body(True)

    vOA = v(17)
    p("s_mul_i32", sT0, sRH, 80)
    p("v_add_u32", vT, sT0, vL16); p("v_lshlrev_b32", vT, 13, vT)
    p("s_lshl_b32", sT0, sHS, 8)
    p("v_lshl_add_u32", vOA, vG, 4, vT); p("v_add_u32", vOA, sT0, vOA)
    p("s_mov_b32", sT2, 0)
    for qt in range(5):
        rl = vM[qt]
        p("v_rcp_f32", rl, LA(qt)[0])
        for st in range(4):
            T = v(32 + ((qt * 4 + st) % 4) * 12, 8); U = v(40 + ((qt * 4 + st) % 4) * 12, 4)
            for r in range(4):
                p("v_accvgpr_read_b32", T[r], O(qt, 2 * st)[r]); p("v_accvgpr_read_b32", T[4 + r], O(qt, 2 * st + 1)[r])
            for r in range(8): p("v_mul_f32", T[r], rl, T[r])
            for r in range(4): p("v_cvt_pk_bf16_f32", U[r], T[2 * r], T[2 * r + 1])
            p("buffer_store_dwordx4", U, vOA, SO, sT2, mods=f"offen offset:{st*64}")
        p("s_add_u32", sT2, sT2, 16 * 8192)
    p.label("K1_END")
    p("s_endpgm")
    for lbl, qt, low in slow_sites:
        X = S(qt); m = vM[qt]
        p.label(lbl)
        p("s_nop", 15)
        p("v_mov_b32", vX2, m); p("v_mov_b32", vX3, m)
        p("v_permlane32_swap_b32", vX2, vX3)
        p("v_max_f32", vX2, vX2, vX3); p("v_mov_b32", vX3, vX2)
        p("v_permlane16_swap_b32", vX2, vX3)
        p("v_max_f32", vX2, vX2, vX3)
        p("v_add_f32", vX2, f32(DOFF), vX2)
        p("v_max_f32", vX2, low, vX2)
        p("v_max_f32", vX3, 0, vX2)
        p("v_sub_f32", vX3, 0, vX3)
        p("v_exp_f32", vX3, vX3)
        for r in range(8): p("v_sub_f32", X[r], X[r], vX2)
        for r in range(4): p("v_sub_f32", NM(qt)[r], NM(qt)[r], vX2)
        for r in range(4): p("v_mul_f32", LA(qt)[r], vX3, LA(qt)[r])
        for t in range(8):
            for r in range(4):
                p("v_accvgpr_read_b32", vX4, O(qt, t)[r]); p("v_mul_f32", vX4, vX3, vX4); p("v_accvgpr_write_b32", O(qt, t)[r], vX4)
        p("s_nop", 3)
        p("s_branch", lbl + "_RET")
    p.raw(kd(K, 512, 256))

def gen_k2(p):
    K = "oproj_kernel"
    p.raw(f".globl {K}\n.p2align 8\n.type {K},@function\n{K}:")
    SA, SB, SC = s(8, 4), s(12, 4), s(16, 4)
    sW, sCnt, sT0, sT1, sT2, sAoff, sBoff, sM, sXcd, sJ, sBr, sMt, sNt = [s(20 + i) for i in range(13)]
    p("s_cmp_ge_u32", s(2), 256)
    p("s_cbranch_scc1", "K2_END")
    p("s_load_dwordx2", s(36, 2), s(0, 2), 32); p("s_load_dwordx2", s(38, 2), s(0, 2), 72)
    p("s_load_dwordx2", s(40, 2), s(0, 2), 80); p("s_load_dwordx2", s(42, 2), s(0, 2), 96)
    vL, vG, vL16, vT, vU = v(1), v(2), v(3), v(4), v(5)
    p("v_lshrrev_b32", vT, 6, v(0)); p("v_and_b32", vL, 63, v(0))
    p("v_readfirstlane_b32", sW, vT)
    p("v_lshrrev_b32", vG, 4, vL); p("v_and_b32", vL16, 15, vL)
    p("s_and_b32", sXcd, s(2), 7); p("s_lshr_b32", sJ, s(2), 3)
    p("s_lshr_b32", sBr, sXcd, 2); p("s_and_b32", sT0, sXcd, 3)
    p("s_and_b32", sT1, sJ, 3); p("s_lshl_b32", sT0, sT0, 2); p("s_add_u32", sMt, sT0, sT1)
    p("s_lshr_b32", sNt, sJ, 2)
    p("s_waitcnt", mods="lgkmcnt(0)")
    p("s_cmp_eq_u32", sBr, 0)
    p("s_cselect_b64", s(36, 2), s(36, 2), s(38, 2))
    p("s_mul_i32", sT0, sBr, 10485760); p("s_mul_i32", sT1, sMt, 80 * 8192); p("s_add_u32", sT0, sT0, sT1)
    add64(p, s(42, 2), s(42, 2), sT0); srd(p, SA, s(42, 2), 80 * 8192)
    p("s_mul_i32", sT0, sNt, 160); add64(p, s(36, 2), s(36, 2), sT0)
    p("s_sub_u32", sT1, 4096 * 1280, sT0)
    p("s_mov_b32", SB[0], s(36)); p("s_mov_b32", SB[1], s(37)); p("s_mov_b32", SB[2], sT1); p("s_mov_b32", SB[3], 0x20000)
    p("s_mul_i32", sT1, sMt, 80 * 2560); p("s_add_u32", sT0, sT0, sT1); p("s_mul_i32", sT1, sBr, 1280); p("s_add_u32", sT0, sT0, sT1)
    add64(p, s(40, 2), s(40, 2), sT0); srd(p, SC, s(40, 2), 79 * 2560 + 160)
    vAo = [v(6 + i) for i in range(5)]
    p("v_lshlrev_b32", vT, 13, vL16); p("v_lshl_add_u32", vT, vG, 4, vT)
    for i in range(5): p("v_add_u32", vAo[i], i * 16 * 8192, vT)
    vBo = [v(11 + i) for i in range(10)]
    p("s_mov_b32", sT0, 6554)
    for i in range(10):
        p("v_add_u32", vT, 64 * i, vL)
        p("v_mul_u32_u24", vU, sT0, vT); p("v_lshrrev_b32", vU, 16, vU)
        p("v_mul_u32_u24", vBo[i], 10, vU); p("v_sub_u32", vBo[i], vT, vBo[i])
        p("v_lshlrev_b32", vBo[i], 4, vBo[i])
        p("v_mul_u32_u24", vU, 1280, vU); p("v_add_u32", vBo[i], vU, vBo[i])
        if i % 4: p("v_subrev_u32", vBo[i], 1024 * (i % 4), vBo[i])
    vBA = v(21)
    p("v_lshrrev_b32", vT, 2, vL16); p("v_lshl_add_u32", vT, vG, 2, vT); p("v_mul_u32_u24", vT, 160, vT)
    p("v_and_b32", vU, 3, vL16); p("v_lshl_add_u32", vT, vU, 3, vT)
    p("s_mul_i32", sM, sW, 20480)
    p("v_add_u32", vBA, sM, vT)
    p("s_lshl_b32", sAoff, sW, 7)
    p("s_mul_i32", sBoff, sW, 64 * 1280)
    ACC = lambda mt, nt: v(24 + (mt * 5 + nt) * 4, 4)
    AFR = lambda buf, ks, mt: a(buf * 40 + (ks * 5 + mt) * 4, 4)
    BFR = lambda ks, nt: a(80 + (ks * 5 + nt) * 4, 4)
    for r in range(100): p("v_mov_b32", v(24 + r), 0)
    def loads(buf):
        L = []
        for i in range(10):
            def f(i=i):
                if i % 4 == 0: p("s_add_u32", m0, sM, buf * 10240 + 1024 * i)
                p("buffer_load_dwordx4", vBo[i], SB, sBoff, mods=f"offen offset:{1024*(i%4)} lds")
            L.append(f)
        for mt in range(5):
            for ks in range(2):
                L.append(lambda ks=ks, mt=mt: p("buffer_load_dwordx4", AFR(buf, ks, mt), vAo[mt], SA, sAoff, mods=f"offen offset:{64*ks}"))
        L.append(lambda: (p("s_add_u32", sAoff, sAoff, 1024), p("s_add_u32", sBoff, sBoff, 512 * 1280)))
        return L
    def breads(buf, ks):
        return [lambda nt=nt, u=u: p("ds_read_b64_tr_b16", BFR(ks, nt)[2*u:2*u+2], vBA, mods=f"offset:{buf*10240+ks*5120+u*2560+nt*32}")
                for nt in range(5) for u in range(2)]
    def mf(buf, ks):
        return [lambda mt=mt, nt=nt: p(MF, ACC(mt, nt), BFR(ks, nt), AFR(buf, ks, mt), ACC(mt, nt)) for nt in range(5) for mt in range(5)]
    def run(L):
        for f in L: f()
    run(loads(0)); run(loads(1))
    p("s_mov_b32", sCnt, 0)
    p.loop_begin("K2_LOOP")
    for buf in range(2):
        p("s_waitcnt", mods="vmcnt(20)")
        run(breads(buf, 0)); run(breads(buf, 1))
        run(mf(buf, 0)); run(mf(buf, 1))
        run(loads(buf))
    p("s_add_u32", sCnt, sCnt, 1)
    p("s_cmp_lt_u32", sCnt, 4)
    p("s_cbranch_scc1", "K2_LOOP")
    p.loop_end()
    p("s_waitcnt", mods="vmcnt(0) lgkmcnt(0)")
    p("s_barrier")
    vRA = v(6)
    p("v_lshlrev_b32", vRA, 4, vL)
    p("s_and_b32", sT0, sW, 3); p("s_mul_i32", sT0, sT0, 25600)
    p("v_add_u32", vRA, sT0, vRA)
    p("s_cmp_lt_u32", sW, 4)
    p("s_cbranch_scc1", "K2_R1")
    for i in range(25): p("ds_write_b128", vRA, v(24 + 4 * i, 4), mods=f"offset:{i*1024}")
    p.label("K2_R1")
    p("s_waitcnt", mods="lgkmcnt(0)"); p("s_barrier")
    p("s_cmp_ge_u32", sW, 4)
    p("s_cbranch_scc1", "K2_R2")
    for i in range(25):
        T = v(8 + 4 * (i % 4), 4)
        p("ds_read_b128", T, vRA, mods=f"offset:{i*1024}")
        if i >= 3:
            j = i - 3; U = v(8 + 4 * (j % 4), 4)
            for r in range(4): p("v_add_f32", v(24 + 4 * j + r), v(24 + 4 * j + r), U[r])
            p("ds_write_b128", vRA, v(24 + 4 * j, 4), mods=f"offset:{j*1024}")
    for j in range(22, 25):
        U = v(8 + 4 * (j % 4), 4)
        for r in range(4): p("v_add_f32", v(24 + 4 * j + r), v(24 + 4 * j + r), U[r])
        p("ds_write_b128", vRA, v(24 + 4 * j, 4), mods=f"offset:{j*1024}")
    p.label("K2_R2")
    p("s_waitcnt", mods="lgkmcnt(0)"); p("s_barrier")
    vRB, vCo = v(7), v(8)
    p("v_lshlrev_b32", vRB, 4, vL)
    p("s_lshl_b32", sT0, sW, 10); p("v_add_u32", vRB, sT0, vRB)
    p("v_mul_u32_u24", vCo, 2560, vL16); p("v_lshl_add_u32", vCo, vG, 3, vCo)
    for rnd in range(4):
        if rnd == 3:
            p("s_cmp_lg_u32", sW, 0); p("s_cbranch_scc1", "K2_END")
        T = [v(24 + 16 * rnd + 4 * q, 4) for q in range(4)]
        for q in range(4):
            off = q * 25600 + rnd * 8192
            if off < 65536: p("ds_read_b128", T[q], vRB, mods=f"offset:{off}")
            else:
                p("v_add_u32", vT, 65536, vRB); p("ds_read_b128", T[q], vT, mods=f"offset:{off-65536}")
        p("s_add_u32", sT0, sW, 8 * rnd); p("s_mul_i32", sT1, sT0, 52429); p("s_lshr_b32", sT1, sT1, 18)
        p("s_mul_i32", sT2, sT1, 5); p("s_sub_u32", sT2, sT0, sT2)
        p("s_mul_i32", sT1, sT1, 16 * 2560); p("s_lshl_b32", sT2, sT2, 5); p("s_add_u32", sT1, sT1, sT2)
        for r in range(4):
            p("v_add_f32", T[0][r], T[0][r], T[1][r]); p("v_add_f32", T[2][r], T[2][r], T[3][r])
        for r in range(4): p("v_add_f32", T[0][r], T[0][r], T[2][r])
        p("v_cvt_pk_bf16_f32", T[1][0], T[0][0], T[0][1]); p("v_cvt_pk_bf16_f32", T[1][1], T[0][2], T[0][3])
        p("buffer_store_dwordx2", T[1][0:2], vCo, SC, sT1, mods="offen")
    p.label("K2_END")
    p("s_endpgm")
    p.raw(kd(K, 248, 128))

def main(out):
    hdr = open(f"cdna_kernels/{NAME}.s.ref").read().split("; Override launch geometry")[0]
    text = hdr
    text += "; @launch kernel=qattn_kernel grid=(256,1,1) block=(256,1,1) lds=163840\n"
    text += "; @launch kernel=oproj_kernel grid=(256,1,1) block=(512,1,1) lds=163840\n"
    text += '.amdgcn_target "amdgcn-amd-amdhsa--gfx950"\n.text\n'
    for g in (gen_k1, gen_k2):
        p = Prog(); g(p); p.finalize(auto_vm=False); text += p.text()
    open(out, "w").write(text)

if __name__ == "__main__":
    main(sys.argv[1] if len(sys.argv) > 1 else "v1.s")
```
